```python
import torch

def _softmax(x, axis=-1):
    return torch.softmax(x, dim=axis)
def _gelu(x):
    return torch.nn.functional.gelu(x, approximate="tanh")
def _silu(x):
    return torch.nn.functional.silu(x)
def _sigmoid(x):
    return torch.sigmoid(x)
def _layernorm(x, axis=-1, eps=1e-5):
    m = x.mean(dim=axis, keepdim=True)
    v = x.var(dim=axis, keepdim=True, unbiased=False)
    return (x - m) / torch.sqrt(v + eps)
def _scatter_add(tgt, idx, src, axis=0):
    return tgt.clone().index_add_(axis, idx, src)
def _segment_sum(src, seg, n):
    out = torch.zeros((n,) + src.shape[1:], dtype=src.dtype)
    return out.index_add_(0, seg, src)
def _pad(x, pw):
    flat = tuple(v for pair in reversed(pw) for v in pair)
    return torch.nn.functional.pad(x, flat)

kernel_name = 'concat_heads__mha_block_cached__mha_block_cached__near_ridge'

def setup_inputs():

    _w = (lambda a: (lambda t: t.to(torch.bfloat16) if t.is_floating_point() else t)(torch.as_tensor(a)))
    def _A_setup():
        B, Sq, D = 32, 32, 512
        H, Sk, Dh = 32, 32, 128
        return {
            "x": _w((lambda *s: torch.randn(*s, dtype=torch.bfloat16) * 0.8)(B, Sq, D)),
            "k_cache": _w((lambda *s: torch.randn(*s, dtype=torch.bfloat16) * 0.8)(B, H, Sk, Dh)),
            "v_cache": _w((lambda *s: torch.randn(*s, dtype=torch.bfloat16) * 0.05)(B, H, Sk, Dh)),
            "wq": _w((lambda *s: torch.randn(*s, dtype=torch.bfloat16) * 0.8)(D, H * Dh) * (D ** -0.5)),
            "wo": _w((lambda *s: torch.randn(*s, dtype=torch.bfloat16) * 0.05)(H * Dh, D) * ((H * Dh) ** -0.5)),
        }
    _A_in = _A_setup()

    def _B_setup():
        B, Sq, D = 32, 32, 512
        H, Sk, Dh = 32, 32, 128
        return {
            "x": _w((lambda *s: torch.randn(*s, dtype=torch.bfloat16) * 0.8)(B, Sq, D)),
            "k_cache": _w((lambda *s: torch.randn(*s, dtype=torch.bfloat16) * 0.8)(B, H, Sk, Dh)),
            "v_cache": _w((lambda *s: torch.randn(*s, dtype=torch.bfloat16) * 0.05)(B, H, Sk, Dh)),
            "wq": _w((lambda *s: torch.randn(*s, dtype=torch.bfloat16) * 0.8)(D, H * Dh) * (D ** -0.5)),
            "wo": _w((lambda *s: torch.randn(*s, dtype=torch.bfloat16) * 0.05)(H * Dh, D) * ((H * Dh) ** -0.5)),
        }
    _B_in = _B_setup()

    return {
        "A_x": _A_in["x"],
        "A_k_cache": _A_in["k_cache"],
        "A_v_cache": _A_in["v_cache"],
        "A_wq": _A_in["wq"],
        "A_wo": _A_in["wo"],
        "B_x": _B_in["x"],
        "B_k_cache": _B_in["k_cache"],
        "B_v_cache": _B_in["v_cache"],
        "B_wq": _B_in["wq"],
        "B_wo": _B_in["wo"],
    }

def reference(A_x, A_k_cache, A_v_cache, A_wq, A_wo, B_x, B_k_cache, B_v_cache, B_wq, B_wo):
    def _A_ref(x, k_cache, v_cache, wq, wo):
        B, Sq, D = x.shape
        H, Dh = 32, 128
        q = (lambda x, *d: x.permute(*d))((x @ wq).reshape(B, Sq, H, Dh), 0, 2, 1, 3)
        scores = torch.einsum("bhqd,bhkd->bhqk", q, k_cache) * (Dh ** -0.5)
        p = _softmax(scores, axis=-1)
        o = torch.einsum("bhqk,bhkd->bhqd", p, v_cache)
        return (lambda x, *d: x.permute(*d))(o, 0, 2, 1, 3).reshape(B, Sq, H * Dh) @ wo

    def _B_ref(x, k_cache, v_cache, wq, wo):
        B, Sq, D = x.shape
        H, Dh = 32, 128
        q = (lambda x, *d: x.permute(*d))((x @ wq).reshape(B, Sq, H, Dh), 0, 2, 1, 3)
        scores = torch.einsum("bhqd,bhkd->bhqk", q, k_cache) * (Dh ** -0.5)
        p = _softmax(scores, axis=-1)
        o = torch.einsum("bhqk,bhkd->bhqd", p, v_cache)
        return (lambda x, *d: x.permute(*d))(o, 0, 2, 1, 3).reshape(B, Sq, H * Dh) @ wo

    a = _A_ref(A_x, A_k_cache, A_v_cache, A_wq, A_wo)
    b = _B_ref(B_x, B_k_cache, B_v_cache, B_wq, B_wo)
    return torch.concatenate([a, b], axis=-1)
```

```python
NAME = "concat_heads__mha_block_cached__mha_block_cached__near_ridge"
HEADER = open("cdna_kernels/%s.s.ref" % NAME).read().split("; Override launch geometry")[0]

class Asm:
    def __init__(self): self.L = []
    def __call__(self, s):
        for l in s.split("\n"):
            l = l.strip()
            if l: self.L.append(("" if l.endswith(":") else "    ") + l)
    def text(self): return "\n".join(self.L) + "\n"

def kd(name, vgpr, acc, sgpr=102):
    return f""".section .rodata,"a"
.p2align 6
.amdhsa_kernel {name}
  .amdhsa_next_free_vgpr {vgpr}
  .amdhsa_next_free_sgpr {sgpr}
  .amdhsa_accum_offset {acc}
  .amdhsa_group_segment_fixed_size 0
  .amdhsa_kernarg_size 104
  .amdhsa_user_sgpr_count 2
  .amdhsa_user_sgpr_kernarg_segment_ptr 1
  .amdhsa_system_sgpr_workgroup_id_x 1
.end_amdhsa_kernel
"""

def assemble_file(kernels, launches):
    out = HEADER
    if len(launches) == 1 and launches[0][0] == NAME + "_kernel":
        _, g, b, l = launches[0]
        out += f"; @launch grid=({g},1,1) block=({b},1,1) lds={l}\n"
    else:
        for (k, g, b, l) in launches:
            out += f"; @launch kernel={k} grid=({g},1,1) block=({b},1,1) lds={l}\n"
    out += '.amdgcn_target "amdgcn-amd-amdhsa--gfx950"\n.text\n'
    for (label, body, vgpr, acc) in kernels:
        out += f".globl {label}\n.p2align 8\n.type {label},@function\n{label}:\n{body}    s_endpgm\n"
    for (label, body, vgpr, acc) in kernels:
        out += kd(label, vgpr, acc)
    return out

def vr(a, n=1, p="v"):
    return f"{p}{a}" if n == 1 else f"{p}[{a}:{a+n-1}]"
```

```python
import sys; sys.path.insert(0, "gen")
from common import *

def main_kernel(polW="", polKV="nt", polX="", polP=""):
    A = Asm()
    A("s_cmp_ge_u32 s2, 256\ns_cbranch_scc1 L_main_end")
    A("s_and_b32 s3, s2, 7\ns_lshr_b32 s20, s2, 3")
    A("s_lshr_b32 s21, s3, 2")
    A("s_and_b32 s22, s3, 3\ns_lshl_b32 s22, s22, 1\ns_and_b32 s23, s20, 1\ns_add_u32 s22, s22, s23")
    A("s_lshr_b32 s23, s20, 1")
    A("s_mul_i32 s24, s21, 40\ns_add_u32 s26, s0, s24\ns_addc_u32 s27, s1, 0")
    A("s_load_dwordx2 s[40:41], s[26:27], 0\ns_load_dwordx2 s[44:45], s[26:27], 8\ns_load_dwordx2 s[48:49], s[26:27], 16")
    A("s_load_dwordx2 s[52:53], s[26:27], 24\ns_load_dwordx2 s[56:57], s[26:27], 32\ns_load_dwordx2 s[60:61], s[0:1], 96")
    A("v_lshrrev_b32 v1, 6, v0\nv_and_b32 v0, 63, v0\ns_nop 0\nv_readfirstlane_b32 s25, v1")
    for b, n in ((40, 1 << 20), (44, 8 << 20), (48, 8 << 20), (52, 4 << 20), (56, 4 << 20), (60, 16 << 20)):
        A(f"s_mov_b32 s{b+2}, {n}\ns_mov_b32 s{b+3}, 0x20000")
    A("v_and_b32 v1, 15, v0\nv_lshrrev_b32 v2, 4, v0")
    A("v_lshlrev_b32 v3, 1, v2\nv_xor_b32 v3, v3, v1\nv_lshlrev_b32 v3, 4, v3")
    A("v_xor_b32 v4, 128, v3")
    A("v_lshlrev_b32 v5, 13, v2\nv_add_u32 v6, v5, v3\nv_add_u32 v7, v5, v4")
    A("v_lshlrev_b32 v5, 10, v2\nv_add_u32 v8, v5, v3\nv_add_u32 v9, v5, v4")
    A("v_lshlrev_b32 v5, 8, v2\nv_add_u32 v10, v5, v3\nv_add_u32 v11, v5, v4")
    A("v_xor_b32 v12, v1, v2\nv_lshlrev_b32 v12, 4, v12\nv_add_u32 v12, v5, v12")
    A("s_mul_i32 s28, s25, 24576\ns_add_u32 s28, s28, 65536")
    A("v_lshrrev_b32 v13, 2, v0\nv_and_b32 v14, 7, v13\nv_lshlrev_b32 v14, 5, v14\nv_lshlrev_b32 v13, 8, v13\nv_add_u32 v13, v13, v14")
    A("v_and_b32 v14, 3, v0\nv_lshlrev_b32 v14, 3, v14\nv_add_u32 v13, v13, v14")
    for t in range(8): A(f"v_xor_b32 v{16+t}, {t*32}, v13\nv_add_u32 v{16+t}, s28, v{16+t}")
    A("v_xor_b32 v13, v1, v2\nv_lshlrev_b32 v13, 4, v13\nv_lshlrev_b32 v14, 10, v1\nv_add_u32 v13, v13, v14")
    for s in range(4): A(f"v_xor_b32 v{24+s}, {s*64}, v13")
    A("v_lshrrev_b32 v13, 1, v2\nv_xor_b32 v13, v13, v1\nv_lshlrev_b32 v13, 4, v13\nv_lshlrev_b32 v14, 8, v1\nv_add_u32 v13, v13, v14")
    A("v_and_b32 v14, 1, v2\nv_lshlrev_b32 v14, 3, v14\nv_add_u32 v28, v13, v14")
    A("v_lshlrev_b32 v29, 4, v0")
    A("s_lshl_b32 s30, s22, 2\ns_add_u32 s30, s30, s25")
    A("s_lshl_b32 s31, s30, 8")
    A("s_lshl_b32 s32, s22, 19\ns_lshl_b32 s33, s25, 8\ns_add_u32 s32, s32, s33")
    A("s_lshl_b32 s33, s23, 19\ns_lshl_b32 s34, s30, 13\ns_add_u32 s33, s33, s34")
    A("s_lshl_b32 s34, s23, 16\ns_lshl_b32 s35, s25, 14\ns_add_u32 s34, s34, s35")
    A("s_waitcnt lgkmcnt(0)")
    for c in range(16):
        A(f"v_xor_b32 v13, {c*16}, v29\ns_add_u32 m0, s35, {c*1024}\ns_add_u32 s36, s34, {c*1024}")
        A(f"buffer_load_dwordx4 v13, s[40:43], s36 offen {polX} lds")
    def dma(n):
        if n >= 36: return
        slot = n % 3
        for i in range(8):
            A(f"s_add_u32 m0, s28, {slot*8192 + i*1024}")
            if n < 16:
                row = 32 * n + 8 * (i & 3) + 4 * (i >> 2)
                A(f"s_add_u32 s36, s31, {row*8192}\nbuffer_load_dwordx4 v{6+(i&1)}, s[52:55], s36 offen {polW} lds")
            elif n < 18:
                A(f"v_xor_b32 v13, {64*(i&3)}, v12\ns_add_u32 s36, s33, {(n-16)*262144 + i*1024}\nbuffer_load_dwordx4 v13, s[44:47], s36 offen {polKV} lds")
            elif n < 20:
                A(f"s_add_u32 s36, s33, {(n-18)*262144 + i*1024}\nbuffer_load_dwordx4 v{10+(i&1)}, s[48:51], s36 offen {polKV} lds")
            else:
                row = 32 * (n - 20) + 4 * i
                A(f"s_add_u32 s36, s32, {row*1024}\nbuffer_load_dwordx4 v{8+(i&1)}, s[56:59], s36 offen {polW} lds")
    def waitslab(n):
        A(f"s_waitcnt vmcnt({8*min(2, 35-n)})")
    def tr_reads(n):
        slot = n % 3
        for t in range(8):
            for jj in range(2):
                A(f"ds_read_b64_tr_b16 v[{32+4*t+2*jj}:{33+4*t+2*jj}], v{16+t} offset:{slot*8192 + jj*4096}")
    ACC = 128
    def acc(t, m): return ACC + (t * 4 + m) * 4
    dma(0); dma(1); dma(2)
    A("s_waitcnt vmcnt(24)\ns_barrier")
    for n in range(16):
        waitslab(n); tr_reads(n)
        for m in range(4): A(f"ds_read_b128 v[{64+4*m}:{67+4*m}], v{24+(n&3)} offset:{(n>>2)*256 + m*16384}")
        A("s_waitcnt lgkmcnt(0)")
        dma(n + 3)
        for t in range(8):
            for m in range(4):
                c = vr(acc(t, m), 4)
                A(f"v_mfma_f32_16x16x32_bf16 {c}, v[{32+4*t}:{35+4*t}], v[{64+4*m}:{67+4*m}], {c if n else 0}")
    A("s_nop 7")
    for m in range(4):
        for u in range(4):
            for jj in range(2):
                a = acc(2 * u + jj, m); d = 64 + (m * 4 + u) * 4 + 2 * jj
                A(f"v_cvt_pk_bf16_f32 v{d}, v{a}, v{a+1}\nv_cvt_pk_bf16_f32 v{d+1}, v{a+2}, v{a+3}")
    A("s_mov_b32 s37, 0x3e0293ee")
    for b in range(2):
        n = 16 + b; slot = n % 3
        waitslab(n)
        for u in range(4):
            for jj in range(2):
                A(f"v_xor_b32 v13, {(4*u+2*jj)*16}, v28\nv_add_u32 v13, s28, v13")
                for kt in range(2):
                    d = 32 + (kt * 4 + u) * 4 + 2 * jj
                    A(f"ds_read_b64 v[{d}:{d+1}], v13 offset:{slot*8192 + kt*4096}")
        A("s_waitcnt lgkmcnt(0)")
        dma(n + 3)
        for u in range(4):
            for mq in range(2):
                for kt in range(2):
                    c = vr(128 + b * 16 + (mq * 2 + kt) * 4, 4); q = 64 + ((b * 2 + mq) * 4 + u) * 4; k = 32 + (kt * 4 + u) * 4
                    A(f"v_mfma_f32_16x16x32_bf16 {c}, v[{k}:{k+3}], v[{q}:{q+3}], {c if u else 0}")
        A("s_nop 7")
        for mq in range(2):
            s = 128 + b * 16 + mq * 8
            A(f"v_max3_f32 v13, v{s}, v{s+1}, v{s+2}\nv_max3_f32 v13, v13, v{s+3}, v{s+4}\nv_max3_f32 v13, v13, v{s+5}, v{s+6}\nv_max_f32 v13, v13, v{s+7}")
            A("v_mov_b32 v14, v13\ns_nop 1\nv_permlane32_swap_b32 v13, v14\ns_nop 1\nv_max_f32 v13, v13, v14")
            A("v_mov_b32 v14, v13\ns_nop 1\nv_permlane16_swap_b32 v13, v14\ns_nop 1\nv_max_f32 v13, v13, v14")
            A("v_mul_f32 v13, s37, v13")
            for i in range(8): A(f"v_fma_f32 v{s+i}, v{s+i}, s37, -v13")
            for i in range(8): A(f"v_exp_f32 v{s+i}, v{s+i}")
            A("s_nop 0")
            A(f"v_add_f32 v13, v{s}, v{s+1}")
            for i in range(2, 8): A(f"v_add_f32 v13, v13, v{s+i}")
            A("v_mov_b32 v14, v13\ns_nop 1\nv_permlane32_swap_b32 v13, v14\ns_nop 1\nv_add_f32 v13, v13, v14")
            A("v_mov_b32 v14, v13\ns_nop 1\nv_permlane16_swap_b32 v13, v14\ns_nop 1\nv_add_f32 v13, v13, v14")
            A("v_rcp_f32 v13, v13\ns_nop 0")
            for i in range(8): A(f"v_mul_f32 v{s+i}, v{s+i}, v13")
            p = 160 + (b * 2 + mq) * 4
            for i in range(4): A(f"v_cvt_pk_bf16_f32 v{p+i}, v{s+2*i}, v{s+2*i+1}")
    for i in range(16): A(f"v_mov_b32 v{64+i}, v{160+i}")
    for b in range(2):
        n = 18 + b
        waitslab(n); tr_reads(n)
        A("s_waitcnt lgkmcnt(0)")
        dma(n + 3)
        for t in range(8):
            for mq in range(2):
                m = b * 2 + mq
                A(f"v_mfma_f32_16x16x32_bf16 {vr(acc(t,m),4)}, v[{32+4*t}:{35+4*t}], v[{64+4*m}:{67+4*m}], 0")
    A("s_nop 7\ns_barrier")
    A("v_add_u32 v13, s35, v29")
    for u in range(4):
        for m in range(4):
            d = 80 + ((u * 4 + m) % 8) * 4
            for jj in range(2):
                a = acc(2 * u + jj, m)
                A(f"v_cvt_pk_bf16_f32 v{d+2*jj}, v{a}, v{a+1}\nv_cvt_pk_bf16_f32 v{d+2*jj+1}, v{a+2}, v{a+3}")
            A(f"ds_write_b128 v13, v[{d}:{d+3}] offset:{(u*4+m)*1024}")
            if (u * 4 + m) % 8 == 7: A("s_waitcnt lgkmcnt(0)")
    A("s_barrier")
    for n in range(20, 36):
        s = n - 20
        waitslab(n); tr_reads(n)
        for m in range(4): A(f"ds_read_b128 v[{64+4*m}:{67+4*m}], v29 offset:{(s*4+m)*1024}")
        A("s_waitcnt lgkmcnt(0)")
        dma(n + 3)
        for t in range(8):
            for m in range(4):
                c = vr(acc(t, m), 4)
                A(f"v_mfma_f32_16x16x32_bf16 {c}, v[{32+4*t}:{35+4*t}], v[{64+4*m}:{67+4*m}], {c if s else 0}")
    A("s_nop 7")
    A("s_lshl_b32 s36, s21, 4\ns_add_u32 s36, s36, s23\ns_lshl_b32 s36, s36, 3\ns_add_u32 s36, s36, s22\ns_lshl_b32 s36, s36, 16\ns_add_u32 s36, s36, s35")
    for u in range(4):
        for m in range(4):
            d = 32 + (u * 4 + m) * 4
            for jj in range(2):
                a = acc(2 * u + jj, m)
                A(f"v_cvt_pk_bf16_f32 v{d+2*jj}, v{a}, v{a+1}\nv_cvt_pk_bf16_f32 v{d+2*jj+1}, v{a+2}, v{a+3}")
            A(f"buffer_store_dwordx4 v[{d}:{d+3}], v29, s[60:63], s36 offen offset:{m*1024} {polP}")
        A("s_add_u32 s36, s36, 4096")
    A("L_main_end:")
    return A.text()

def reduce_kernel():
    A = Asm()
    A("s_cmp_ge_u32 s2, 512\ns_cbranch_scc1 L_red_end")
    A("s_load_dwordx2 s[8:9], s[0:1], 96\ns_load_dwordx2 s[12:13], s[0:1], 80")
    A("s_mov_b32 s10, 0x1000000\ns_mov_b32 s11, 0x20000\ns_mov_b32 s14, 0x200000\ns_mov_b32 s15, 0x20000")
    A("s_lshr_b32 s3, s2, 4\ns_and_b32 s4, s2, 15\ns_lshl_b32 s5, s3, 19\ns_lshl_b32 s6, s4, 12\ns_add_u32 s5, s5, s6")
    A("v_lshlrev_b32 v1, 4, v0")
    A("s_waitcnt lgkmcnt(0)")
    for j in range(8):
        A(f"buffer_load_dwordx4 v[{8+4*j}:{11+4*j}], v1, s[8:11], s5 offen\ns_add_u32 s5, s5, 65536")
    A("s_and_b32 s6, s3, 15\ns_lshl_b32 s6, s6, 17\ns_lshr_b32 s7, s3, 4\ns_lshl_b32 s7, s7, 10\ns_add_u32 s6, s6, s7\ns_lshl_b32 s7, s4, 6\ns_add_u32 s6, s6, s7")
    A("v_lshrrev_b32 v2, 6, v0\nv_lshlrev_b32 v2, 4, v2\nv_and_b32 v3, 15, v0\nv_add_u32 v2, v2, v3\nv_lshlrev_b32 v2, 11, v2")
    A("v_bfe_u32 v3, v0, 4, 2\nv_lshlrev_b32 v3, 3, v3\nv_add_u32 v2, v2, v3")
    for j in range(8):
        A(f"s_waitcnt vmcnt({7-j})")
        for i in range(4):
            s = 8 + 4 * j + i
            if j == 0:
                A(f"v_lshlrev_b32 v{40+2*i}, 16, v{s}\nv_and_b32 v{41+2*i}, 0xffff0000, v{s}")
            else:
                A(f"v_lshlrev_b32 v4, 16, v{s}\nv_and_b32 v5, 0xffff0000, v{s}\nv_add_f32 v{40+2*i}, v{40+2*i}, v4\nv_add_f32 v{41+2*i}, v{41+2*i}, v5")
    for i in range(4): A(f"v_cvt_pk_bf16_f32 v{4+i}, v{40+2*i}, v{41+2*i}")
    A("buffer_store_dwordx2 v[4:5], v2, s[12:15], s6 offen\nbuffer_store_dwordx2 v[6:7], v2, s[12:15], s6 offen offset:32")
    A("L_red_end:")
    return A.text()

def build(extra_first=None, **kw):
    ks = [("mha_main_kernel", main_kernel(**kw), 256, 256), ("mha_reduce_kernel", reduce_kernel(), 48, 48)]
    ls = [("mha_main_kernel", 256, 256, 163840), ("mha_reduce_kernel", 512, 256, 0)]
    if extra_first:
        ks = [extra_first[0]] + ks; ls = [extra_first[1]] + ls
    return assemble_file(ks, ls)

if __name__ == "__main__":
    open(sys.argv[1], "w").write(build())
```

```python
import sys; sys.path.insert(0, "gen")
from common import *
import v0
def probe(argoff, n, stride, pol, size):
    A = Asm()
    A("s_cmp_ge_u32 s2, 1\ns_cbranch_scc1 L_probe_end")
    A(f"s_load_dwordx2 s[8:9], s[0:1], {argoff}\ns_mov_b32 s10, {size}\ns_mov_b32 s11, 0x20000\nv_mov_b32 v1, 0\ns_mov_b32 s4, 0\ns_mov_b32 s5, 0\ns_waitcnt lgkmcnt(0)")
    if n:
        A("L_probe_loop:")
        A(f"buffer_load_dword v2, v1, s[8:11], s5 offen {pol}\ns_add_u32 s5, s5, {stride}\ns_add_u32 s4, s4, 1\ns_cmp_lt_u32 s4, {n}\ns_waitcnt vmcnt(0)\ns_cbranch_scc1 L_probe_loop")
    A("L_probe_end:")
    return (("probe_kernel", A.text(), 8, 8), ("probe_kernel", 1, 64, 0))
d = "var/"
import os; os.makedirs(d, exist_ok=True)
open(d + "a_base.s", "w").write(v0.build())
open(d + "b_plain.s", "w").write(v0.build(polKV=""))
open(d + "c_allnt.s", "w").write(v0.build(polKV="nt", polW="nt", polX="nt"))
open(d + "d_probeK.s", "w").write(v0.build(extra_first=probe(8, 256, 8192 + 256, "", 8 << 20)))
open(d + "e_empty.s", "w").write(v0.build(extra_first=probe(8, 0, 0, "", 8 << 20)))
open(d + "f_probeBWo.s", "w").write(v0.build(extra_first=probe(72, 256, 8192 + 256, "", 4 << 20)))
open(d + "g_probeWS0.s", "w").write(v0.build(extra_first=probe(96, 256, 8192 + 256, "", 256 << 20)))
open(d + "h_probeWSall.s", "w").write(v0.build(extra_first=probe(96, 256, (1 << 20) - 4096 + 256, "", 256 << 20)))
open(d + "i_probeOut.s", "w").write(v0.build(extra_first=probe(80, 256, 4096 + 256, "", 2 << 20)))
open(d + "j_sc1P.s", "w").write(v0.build(polP="sc1"))
open(d + "k_ntP.s", "w").write(v0.build(polP="nt"))
open(d + "l_ntsc1P.s", "w").write(v0.build(polP="nt sc1"))
```
